```python
import torch

def _softmax(x, axis=-1):
    return torch.softmax(x, dim=axis)
def _gelu(x):
    return torch.nn.functional.gelu(x, approximate="tanh")
def _silu(x):
    return torch.nn.functional.silu(x)
def _sigmoid(x):
    return torch.sigmoid(x)
def _layernorm(x, axis=-1, eps=1e-5):
    m = x.mean(dim=axis, keepdim=True)
    v = x.var(dim=axis, keepdim=True, unbiased=False)
    return (x - m) / torch.sqrt(v + eps)
def _scatter_add(tgt, idx, src, axis=0):
    return tgt.clone().index_add_(axis, idx, src)
def _segment_sum(src, seg, n):
    out = torch.zeros((n,) + src.shape[1:], dtype=src.dtype)
    return out.index_add_(0, seg, src)
def _pad(x, pw):
    flat = tuple(v for pair in reversed(pw) for v in pair)
    return torch.nn.functional.pad(x, flat)

kernel_name = 'recurrent_scan__gqa_block_cached__mixer_channel_mlp__decode'

def setup_inputs():

    _w = (lambda a: (lambda t: t.to(torch.bfloat16) if t.is_floating_point() else t)(torch.as_tensor(a)))
    def _A_setup():
        B, Sq, D = 1, 1, 512
        Hq, Hkv, Sk, Dh = 32, 32, 8192, 128
        assert Hq % Hkv == 0, (Hq, Hkv)
        return {
            "x": _w((lambda *s: torch.randn(*s, dtype=torch.bfloat16) * 0.1)(B, Sq, D)),
            "k_cache": _w((lambda *s: torch.randn(*s, dtype=torch.bfloat16) * 0.8)(B, Hkv, Sk, Dh)),
            "v_cache": _w((lambda *s: torch.randn(*s, dtype=torch.bfloat16) * 3.2)(B, Hkv, Sk, Dh)),
            "wq": _w((lambda *s: torch.randn(*s, dtype=torch.bfloat16) * 0.8)(D, Hq * Dh) * (D ** -0.5)),
            "wo": _w((lambda *s: torch.randn(*s, dtype=torch.bfloat16) * 3.2)(Hq * Dh, D) * ((Hq * Dh) ** -0.5)),
        }
    _A_in = _A_setup()

    def _B_setup():
        B, S, D, F = 1, 1, 512, 1376
        return {
            "x": _w((lambda *s: torch.randn(*s, dtype=torch.bfloat16) * 0.1)(B, S, D)),
            "w1": _w((lambda *s: torch.randn(*s, dtype=torch.bfloat16) * 3.2)(D, F) * (D ** -0.5)),
            "b1": _w((lambda *s: torch.randn(*s, dtype=torch.bfloat16) * 3.2)(F)),
            "w2": _w((lambda *s: torch.randn(*s, dtype=torch.bfloat16) * 3.2)(F, D) * (F ** -0.5)),
            "b2": _w((lambda *s: torch.randn(*s, dtype=torch.bfloat16) * 3.2)(D)),
        }
    _B_in = _B_setup()

    return {
        "A_x": _A_in["x"],
        "A_k_cache": _A_in["k_cache"],
        "A_v_cache": _A_in["v_cache"],
        "A_wq": _A_in["wq"],
        "A_wo": _A_in["wo"],
        "B_x": _B_in["x"],
        "B_w1": _B_in["w1"],
        "B_b1": _B_in["b1"],
        "B_w2": _B_in["w2"],
        "B_b2": _B_in["b2"],
    }

def reference(A_x, A_k_cache, A_v_cache, A_wq, A_wo, B_x, B_w1, B_b1, B_w2, B_b2):
    def _A_ref(x, k_cache, v_cache, wq, wo):
        B, Sq, D = x.shape
        Hq, Dh = 32, 128
        Hkv = k_cache.shape[1]
        rep = Hq // Hkv
        q = (lambda x, *d: x.permute(*d))((x @ wq).reshape(B, Sq, Hq, Dh), 0, 2, 1, 3)
        k = (lambda x, n, axis: torch.repeat_interleave(x, n, dim=axis))(k_cache, rep, axis=1)
        v = (lambda x, n, axis: torch.repeat_interleave(x, n, dim=axis))(v_cache, rep, axis=1)
        scores = torch.einsum("bhqd,bhkd->bhqk", q, k) * (Dh ** -0.5)
        p = _softmax(scores, axis=-1)
        o = torch.einsum("bhqk,bhkd->bhqd", p, v)
        return (lambda x, *d: x.permute(*d))(o, 0, 2, 1, 3).reshape(B, Sq, Hq * Dh) @ wo

    def _B_ref(x, w1, b1, w2, b2):
        y = _layernorm(x, axis=-1)
        h = _gelu(torch.einsum("bsd,df->bsf", y, w1) + b1)
        return torch.einsum("bsf,fd->bsd", h, w2) + b2

    x = A_x
    xn = _layernorm(x, axis=-1)
    s = _A_ref(xn, A_k_cache, A_v_cache, A_wq, A_wo)
    g = _silu(_B_ref(xn, B_w1, B_b1, B_w2, B_b2))
    return x + s * g
```

```python
KNAME = "recurrent_scan__gqa_block_cached__mixer_channel_mlp__decode_kernel"
HEADER_COMMENT = ""

class Asm:
    def __init__(self):
        self.lines = []
    def __call__(self, s=""):
        for l in s.split("\n"):
            self.lines.append(l)
    def label(self, n):
        self.lines.append(f"{n}:")
    def text(self):
        return "\n".join(self.lines) + "\n"

def vr(a, n=1):
    return f"v{a}" if n == 1 else f"v[{a}:{a+n-1}]"
def ar(a, n=1):
    return f"a{a}" if n == 1 else f"a[{a}:{a+n-1}]"
def sr(a, n=1):
    return f"s{a}" if n == 1 else f"s[{a}:{a+n-1}]"

def kernel_file(body, grid, block, lds, nvgpr, nsgpr, accum, name=KNAME, extra_top=""):
    return f"""; @launch grid=({grid},1,1) block=({block},1,1) lds={lds}
{extra_top}.amdgcn_target "amdgcn-amd-amdhsa--gfx950"
.text
.globl {name}
.p2align 8
.type {name},@function
{name}:
{body}
.section .rodata,"a"
.p2align 6
.amdhsa_kernel {name}
  .amdhsa_next_free_vgpr {nvgpr}
  .amdhsa_next_free_sgpr {nsgpr}
  .amdhsa_accum_offset {accum}
  .amdhsa_group_segment_fixed_size 0
  .amdhsa_kernarg_size 104
  .amdhsa_user_sgpr_count 2
  .amdhsa_user_sgpr_kernarg_segment_ptr 1
  .amdhsa_system_sgpr_workgroup_id_x 1
.end_amdhsa_kernel
"""
```

```python
import sys, os, math
from asmgen import *

HEADER = open(os.path.join(os.path.dirname(os.path.abspath(__file__)), "header.txt")).read()

RS   = 1152
QP   = 0
WO   = QP + 16*RS
W2   = WO + 16384
OR_  = W2 + 8192
QL   = OR_ + 4096
HP   = QL + 512
HB   = HP + 256
OB   = HB + 128
ML   = OB + 256
FLAG = ML + 64
CNT  = FLAG + 4
LDS_SIZE = FLAG + 64
QX = 0x1000
OX = QX + 0x40000
FX = OX + 0x40000
STAMP = 0x100000
WS_REC = 0x200000
sW, sT, sJ = 3, 4, 5
sNCH, sC = 6, 7
SRD_K, SRD_V, SRD_X, SRD_WQ, SRD_W1, SRD_WO, SRD_W2, SRD_WS, SRD_B1, SRD_B2, SRD_OUT = 8, 12, 16, 20, 24, 28, 32, 36, 40, 44, 48
sTile = 52
sXoff, sK32, sK8 = 60, 61, 62
sTmp = 63
P_X, P_K, P_V, P_WQ, P_WO, P_BX, P_W1, P_B1 = 64, 66, 68, 70, 72, 74, 76, 78
P_W2, P_B2, P_OUT, P_DBG, P_WS = 80, 82, 84, 86, 88
sQXown, sQXt, sQXt4, sOXown, sOXt, sOXt4, sFpub, sFown = 64, 65, 66, 67, 68, 69, 70, 71
sMask = 72
sSel = 80
sScale = 86
sIt = 87
sA, sB = 88, 89
def sStamp(k): return 92 + k if k < 8 else 16 + (k - 8)
vL, vK, vLin = 0, 1, 2
vT0, vT1, vT2 = 3, 4, 5
vWoff, vTr = 6, 7
vO = 8
vDA, vDB = 12, 16
vS = 20
vM = 28
vB = 32
vTag, vB1, vXf, vB2f = 48, 49, 50, 51
vWt = 52
vW, vMres = 60, 61
vT3, vT4 = 62, 63
vV = 64
vKK = 128

SCALE = 128 ** -0.5 * math.log2(math.e)
import struct
def f2u(x): return struct.unpack("<I", struct.pack("<f", x))[0]
def hx(x): return "0x%08x" % (x & 0xffffffff)

class VM:
    def __init__(self, a, q=None):
        self.a = a; self.q = list(q) if q else []
    def issue(self, name, text):
        self.a("    " + text); self.q.append(name)
    def wait(self, name):
        idx = max(i for i, n in enumerate(self.q) if n == name)
        n = len(self.q) - 1 - idx
        self.a(f"    s_waitcnt vmcnt({min(n, 63)})")
    def wait_out(self, n):
        self.a(f"    s_waitcnt vmcnt({min(n, 63)})")
    def copy(self, a=None): return VM(a or self.a, self.q)

def srd(a, d, p, nrec, extra=None):
    if extra is None:
        a(f"    s_mov_b32 s{d}, s{p}\n    s_and_b32 s{d+1}, s{p+1}, 0xffff")
    else:
        a(f"    s_add_u32 s{d}, s{p}, s{extra}\n    s_addc_u32 s{d+1}, s{p+1}, 0\n    s_and_b32 s{d+1}, s{d+1}, 0xffff")
    if isinstance(nrec, str): a(f"    s_mov_b32 s{d+2}, {nrec}")
    else: a(f"    s_mov_b32 s{d+2}, {hx(nrec)}")
    a(f"    s_mov_b32 s{d+3}, 0x20000")

def wave_reduce(a, op, v, sdst, fill=None, only_quads=False):
    steps = ["row_ror:4", "row_ror:8"] if only_quads else ["row_ror:1", "row_ror:2", "row_ror:4", "row_ror:8"]
    for s in steps:
        a(f"    s_nop 1\n    v_{op}_f32_dpp v{v}, v{v}, v{v} {s} row_mask:0xf bank_mask:0xf")
    a(f"    s_nop 1\n    v_{op}_f32_dpp v{v}, v{v}, v{v} row_bcast:15 row_mask:0xa bank_mask:0xf")
    a(f"    s_nop 1\n    v_{op}_f32_dpp v{v}, v{v}, v{v} row_bcast:31 row_mask:0xc bank_mask:0xf")
    a(f"    s_nop 1\n    v_readlane_b32 s{sdst}, v{v}, 63\n    s_nop 1")

def bf16r(a, dst, src, tmp=None):
    a(f"    v_cvt_pk_bf16_f32 v{dst}, v{src}, v{src}\n    v_and_b32 v{dst}, 0xffff0000, v{dst}")

def layernorm_stats(a, x0, tmp, sMean, sRs):
    t = tmp
    a(f"""
    v_add_f32 v{t}, v{x0}, v{x0+1}
    v_add_f32 v{t+1}, v{x0+2}, v{x0+3}
    v_add_f32 v{t+2}, v{x0+4}, v{x0+5}
    v_add_f32 v{t+3}, v{x0+6}, v{x0+7}
    v_add_f32 v{t}, v{t}, v{t+1}
    v_add_f32 v{t+2}, v{t+2}, v{t+3}
    v_add_f32 v{t}, v{t}, v{t+2}""")
    wave_reduce(a, "add", t, sA)
    a(f"""
    v_mov_b32 v{t+4}, s{sA}
    v_mul_f32 v{t+4}, 0x3b000000, v{t+4}""")
    for e in range(8):
        a(f"    v_sub_f32 v{t+5+e}, v{x0+e}, v{t+4}")
    a(f"    v_mul_f32 v{t}, v{t+5}, v{t+5}\n    v_mul_f32 v{t+1}, v{t+6}, v{t+6}")
    for e in range(2, 8, 2):
        a(f"    v_fmac_f32 v{t}, v{t+5+e}, v{t+5+e}\n    v_fmac_f32 v{t+1}, v{t+6+e}, v{t+6+e}")
    a(f"    v_add_f32 v{t}, v{t}, v{t+1}")
    wave_reduce(a, "add", t, sA)
    a(f"    v_mov_b32 v{t}, s{sA}\n    v_mul_f32 v{t}, 0x3b000000, v{t}")
    bf16r(a, t, t)
    a(f"    v_add_f32 v{t}, {hx(f2u(1e-5))}, v{t}")
    bf16r(a, t, t)
    a(f"    v_sqrt_f32 v{t}, v{t}\n    s_nop 0")
    bf16r(a, t, t)
    a(f"    v_rcp_f32 v{t}, v{t}")
    bf16r(a, t+4, t+4)
    a(f"    s_nop 0\n    v_readfirstlane_b32 s{sRs}, v{t}\n    v_readfirstlane_b32 s{sMean}, v{t+4}\n    s_nop 1")

def norm1(a, dst, src, sMean, sRs):
    a(f"    v_subrev_f32 v{dst}, s{sMean}, v{src}")
    bf16r(a, dst, dst)
    a(f"    v_mul_f32 v{dst}, s{sRs}, v{dst}")
    bf16r(a, dst, dst)

def stamp(a, cfg, k):
    if cfg["stamps"]:
        a(f"    s_memrealtime s[100:101]\n    s_waitcnt lgkmcnt(0)\n    s_mov_b32 s{sStamp(k)}, s100")

def kload(vm, i):
    T, n = i >> 2, i & 3
    vm.issue(f"K{i}", f"buffer_load_dwordx4 {vr(vKK+4*i,4)}, v{vK}, s[{SRD_K}:{SRD_K+3}], s{sTile+T} offen offset:{n*1024} nt")
def vreg_of(i): return vV + 4*i if i < 16 else vKK + 4*(i-16)
def vload(vm, i):
    T, n = i >> 2, i & 3
    vm.issue(f"V{i}", f"buffer_load_dwordx4 {vr(vreg_of(i),4)}, v{vLin}, s[{SRD_V}:{SRD_V+3}], s{sTile+T} offen offset:{n*1024} nt")
def sload(vm, s):
    if s < 32: kload(vm, s)
    else: vload(vm, s-32)

def spin_lds(a, addr, val, name, vt):
    a(f"""
    s_mov_b32 s{sIt}, 0
{name}_spin:
    v_mov_b32 v{vt}, 0
    ds_read_b32 v{vt}, v{vt} offset:{addr}
    s_add_u32 s{sIt}, s{sIt}, 1
    s_waitcnt lgkmcnt(0)
    v_readfirstlane_b32 s{sA}, v{vt}
    s_cmp_eq_u32 s{sA}, {val}
    s_cbranch_scc1 {name}_ok
    s_cmp_lt_u32 s{sIt}, 0x100000
    s_cbranch_scc1 {name}_spin
{name}_ok:""")

def qk_softmax(a, cfg, tagname):
    Q = vDA
    a(f"""
    v_lshrrev_b32 v{vT0}, 4, v{vL}
    v_lshlrev_b32 v{vT0}, 6, v{vT0}
    v_and_b32 v{vT1}, 3, v{vL}
    v_lshl_add_u32 v{vT0}, v{vT1}, 4, v{vT0}
    ds_read_b128 {vr(Q,4)}, v{vT0} offset:{QL}
    s_waitcnt lgkmcnt(0)""")
    for n in range(4):
        for q in range(4):
            a(f"    v_cndmask_b32_e64 v{vB+4*n+q}, 0, v{Q+q}, s[{sMask+2*n}:{sMask+2*n+1}]")
    a("    s_nop 1")
    def mf(T):
        D = vDA if T % 2 == 0 else vDB
        for n in range(4):
            c = "0" if n == 0 else vr(D, 4)
            a(f"    v_mfma_f32_16x16x32_bf16 {vr(D,4)}, {vr(vKK+16*T+4*n,4)}, {vr(vB+4*n,4)}, {c}")
    def red(T):
        D = vDA if T % 2 == 0 else vDB
        a(f"    v_mov_b32_dpp v{vS+T}, v{D} quad_perm:[0,0,0,0] row_mask:0xf bank_mask:0xf")
        for c in range(1, 4):
            a(f"    v_add_f32_dpp v{vS+T}, v{D+c}, v{vS+T} quad_perm:[{c},{c},{c},{c}] row_mask:0xf bank_mask:0xf")
    mf(0)
    for T in range(1, 8):
        mf(T)
        a("    s_nop 3")
        red(T-1)
    a("    s_nop 7")
    red(7)
    a(f"""
    v_max3_f32 v{vT0}, v{vS}, v{vS+1}, v{vS+2}
    v_max3_f32 v{vT1}, v{vS+3}, v{vS+4}, v{vS+5}
    v_max3_f32 v{vT0}, v{vT0}, v{vS+6}, v{vS+7}
    v_max_f32 v{vT0}, v{vT0}, v{vT1}""")
    wave_reduce(a, "max", vT0, sA, only_quads=True)
    a(f"""
    v_mov_b32 v{vT3}, s{sA}
    v_mul_f32 v{vT3}, s{sScale}, v{vT3}           ; m*c""")
    for T in range(8):
        a(f"    v_fma_f32 v{vS+T}, v{vS+T}, s{sScale}, -v{vT3}")
    for T in range(8):
        a(f"    v_exp_f32 v{vS+T}, v{vS+T}")
    a(f"""
    s_nop 0
    v_add_f32 v{vT0}, v{vS}, v{vS+1}
    v_add_f32 v{vT1}, v{vS+2}, v{vS+3}
    v_add_f32 v{vT2}, v{vS+4}, v{vS+5}
    v_add_f32 v{vT4}, v{vS+6}, v{vS+7}
    v_add_f32 v{vT0}, v{vT0}, v{vT1}
    v_add_f32 v{vT2}, v{vT2}, v{vT4}
    v_add_f32 v{vT0}, v{vT0}, v{vT2}""")
    for T in range(8):
        a(f"    v_cvt_pk_bf16_f32 v{vS+T}, v{vS+T}, v{vS+T}")
    wave_reduce(a, "add", vT0, sA, only_quads=True)
    a(f"""
    v_mov_b32 v{vT4}, s{sA}
    s_lshl_b32 s{sA}, s{sW}, 3
    v_mov_b32 v{vT0}, s{sA}
    v_mov_b32 v{vT1}, 1
    v_mov_b32 v{vT2}, 0
    s_mov_b64 exec, 1
    ds_write_b64 v{vT0}, v[{vT3}:{vT4}] offset:{ML}
    ds_add_u32 v{vT2}, v{vT1} offset:{CNT}
    s_mov_b64 exec, -1""")

def pv_ands(a, i, bset):
    T, n = i >> 2, i & 3
    for q in range(4):
        a(f"    v_and_b32_dpp v{vB+4*bset+q}, v{vS+T}, v{vM+q} row_newbcast:{4*n} row_mask:0xf bank_mask:0xf")
def pv_mfma(a, i, bset):
    c = "0" if i == 0 else vr(vO, 4)
    a(f"    v_mfma_f32_16x16x32_bf16 {vr(vO,4)}, {vr(vreg_of(i),4)}, {vr(vB+4*bset,4)}, {c}")

def poll8(a, vm, dst, sbase, sbase4, name, body_after_fail=None):
    for i in range(8):
        vm.issue(name, f"buffer_load_dwordx4 {vr(dst+4*i,4)}, v{vLin}, s[{SRD_WS}:{SRD_WS+3}], s{sbase if i < 4 else sbase4} offen offset:{(i&3)*1024} sc1")

def check8(a, dst, tagidx, t0, t1):
    a(f"    v_xor_b32 v{t0}, v{dst+tagidx}, v{vTag}")
    for i in range(1, 8):
        a(f"    v_xor_b32 v{t1}, v{dst+4*i+tagidx}, v{vTag}\n    v_or_b32 v{t0}, v{t0}, v{t1}")
    a(f"    v_cmp_ne_u32 vcc, 0, v{t0}")

def direct_mm(a, nkb, areg, breg, dreg, out):
    for kb in range(nkb):
        for cb in range(4):
            c = "0" if kb == 0 else vr(dreg+4*cb, 4)
            a(f"    v_mfma_f32_16x16x32_bf16 {vr(dreg+4*cb,4)}, {vr(areg+4*kb,4)}, {vr(breg+4*(4*kb+cb),4)}, {c}")
    a("    s_nop 7")
    a(f"    v_cndmask_b32_e64 v{out}, v{dreg}, v{dreg+4}, s[{sSel}:{sSel+1}]")
    a(f"    v_cndmask_b32_e64 v{out}, v{out}, v{dreg+8}, s[{sSel+2}:{sSel+3}]")
    a(f"    v_cndmask_b32_e64 v{out}, v{out}, v{dreg+12}, s[{sSel+4}:{sSel+5}]")

def tr_reads(a, base, nkb, dst):
    for kb in range(nkb):
        for cb in range(4):
            for h in range(2):
                r = dst + 4*(4*kb+cb) + 2*h
                a(f"    ds_read_b64_tr_b16 v[{r}:{r+1}], v{vTr} offset:{base + kb*4096 + h*512 + cb*32}")

def prologue(a, cfg):
    R0 = cfg["R0"]
    vm = VM(a)
    a(f"""
    s_cmp_ge_u32 s2, 256
    s_cbranch_scc1 L_end
    s_load_dwordx16 s[64:79], s[0:1], 0
    s_load_dwordx8 s[80:87], s[0:1], 64
    s_load_dwordx2 s[88:89], s[0:1], 96""")
    stamp(a, cfg, 0)
    a(f"""
    v_lshrrev_b32 v{vT0}, 6, v0
    v_and_b32 v{vL}, 63, v0
    v_readfirstlane_b32 s{sW}, v{vT0}
    s_lshr_b32 s{sT}, s2, 3
    s_and_b32 s{sJ}, s2, 7
    ; C_t = (172 t) >> 5, nchunks = C_(t+1) - C_t
    s_mul_i32 s{sC}, s{sT}, 172
    s_add_u32 s{sNCH}, s{sC}, 172
    s_lshr_b32 s{sC}, s{sC}, 5
    s_lshr_b32 s{sNCH}, s{sNCH}, 5
    s_sub_u32 s{sNCH}, s{sNCH}, s{sC}
    s_add_u32 s{sTmp}, s{sT}, s{sJ}""")
    a(f"""
    s_add_u32 s{sTmp}, s{sTmp}, s{sW}
    s_and_b32 s{sTmp}, s{sTmp}, 7""")
    for T in range(8):
        a(f"    s_xor_b32 s{sTile+T}, s{sTmp}, {T}\n    s_lshl_b32 s{sTile+T}, s{sTile+T}, 12")
    a(f"""
    v_lshlrev_b32 v{vLin}, 4, v{vL}
    v_lshrrev_b32 v{vT0}, 4, v{vL}               ; g
    v_bfe_u32 v{vT1}, v{vL}, 2, 2                ; a
    v_and_b32 v{vT2}, 3, v{vL}                   ; c
    v_lshlrev_b32 v{vK}, 6, v{vT0}
    v_lshl_add_u32 v{vK}, v{vT1}, 8, v{vK}
    v_lshl_add_u32 v{vK}, v{vT2}, 4, v{vK}
    v_lshlrev_b32 v{vTr}, 10, v{vT0}
    v_lshl_add_u32 v{vTr}, v{vT1}, 7, v{vTr}
    v_lshl_add_u32 v{vTr}, v{vT2}, 3, v{vTr}
    ; wo / w2 : (l>>3)*1024 + (l&7)*16
    v_lshrrev_b32 v116, 3, v{vL}                 ; l>>3
    v_and_b32 v117, 7, v{vL}                     ; l&7
    v_lshlrev_b32 v{vWoff}, 10, v116
    v_lshl_add_u32 v{vWoff}, v117, 4, v{vWoff}
    ; wq : g*8192 + (l&15)*16
    v_and_b32 v118, 15, v{vL}
    v_lshlrev_b32 v119, 13, v{vT0}
    v_lshl_add_u32 v119, v118, 4, v119
    v_mul_u32_u24 v120, 0xac0, v116
    v_lshl_add_u32 v120, v117, 4, v120
    v_cmp_gt_u32 vcc, s{sNCH}, v117
    v_mov_b32 v121, 0x40000000
    v_lshlrev_b32 v122, 1, v{vT0}
    v_cndmask_b32 v120, v121, v120, vcc
    v_lshlrev_b32 v123, 1, v116
    s_lshl_b32 s{sXoff}, s{sJ}, 6
    s_lshl_b32 s{sTmp}, s{sW}, 3
    s_add_u32 s{sXoff}, s{sXoff}, s{sTmp}        ; row0
    s_mov_b32 s{sK32}, 32768
    s_mov_b32 s{sK8}, 8192
    s_waitcnt lgkmcnt(0)""")
    srd(a, SRD_X, P_X, 1024)
    srd(a, SRD_WS, P_WS, WS_REC)
    a(f"    s_cmp_lg_u32 s{sW}, 0\n    s_cbranch_scc1 L_noextra")
    a(f"    s_lshl_b32 s{sTmp}, s{sC}, 4")
    srd(a, SRD_B1, P_B1, 0, extra=sTmp)
    a(f"    s_sub_u32 s{SRD_B1+2}, 2752, s{sTmp}")
    srd(a, SRD_B2, P_B2, 1024)
    a(f"""
    v_mov_b32 v{vT3}, 0
    v_lshlrev_b32 v{vT4}, 1, v{vL}
    v_lshrrev_b32 v124, 5, v{vL}
    v_lshlrev_b32 v124, 1, v124
    s_lshl_b32 s{sTmp}, s2, 2
    buffer_load_dword v{vTag}, v{vT3}, s[{SRD_WS}:{SRD_WS+3}], 0 offen sc1
    buffer_load_ushort v{vB1}, v{vT4}, s[{SRD_B1}:{SRD_B1+3}], 0 offen
    buffer_load_ushort v{vXf}, v124, s[{SRD_X}:{SRD_X+3}], s{sTmp} offen
    buffer_load_ushort v{vB2f}, v124, s[{SRD_B2}:{SRD_B2+3}], s{sTmp} offen
    v_mov_b32 v{vT4}, 0
    ds_write_b64 v{vT3}, v[{vT3}:{vT4}] offset:{FLAG}
L_noextra:""")
    a(f"    s_lshl_b32 s{sTmp}, s{sXoff}, 1")
    vm.issue("x", f"buffer_load_dwordx4 v[64:67], v{vLin}, s[{SRD_X}:{SRD_X+3}], 0 offen")
    vm.issue("xs", f"buffer_load_ushort v104, v122, s[{SRD_X}:{SRD_X+3}], s{sTmp} offen")
    vm.issue("xs", f"buffer_load_ushort v105, v122, s[{SRD_X}:{SRD_X+3}], s{sTmp} offen offset:8")
    vm.issue("xs", f"buffer_load_ushort v106, v123, s[{SRD_X}:{SRD_X+3}], s{sTmp} offen")
    a(f"""
    s_lshl_b32 s{sTmp}, s{sXoff}, 13
    s_lshl_b32 s90, s{sT}, 8
    s_add_u32 s{sTmp}, s{sTmp}, s90""")
    srd(a, SRD_WQ, P_WQ, 7*8192+256, extra=sTmp)
    vm.issue("wq", f"buffer_load_dwordx4 v[80:83], v119, s[{SRD_WQ}:{SRD_WQ+3}], 0 offen nt")
    vm.issue("wq", f"buffer_load_dwordx4 v[84:87], v119, s[{SRD_WQ}:{SRD_WQ+3}], s{sK32} offen nt")
    a(f"""
    s_mul_i32 s{sTmp}, s{sXoff}, 2752
    s_lshl_b32 s90, s{sC}, 4
    s_add_u32 s{sTmp}, s{sTmp}, s90""")
    srd(a, SRD_W1, P_W1, 7*2752+96, extra=sTmp)
    vm.issue("w1", f"buffer_load_dwordx4 v[88:91], v120, s[{SRD_W1}:{SRD_W1+3}], 0 offen nt")
    a(f"""
    s_lshl_b32 s{sTmp}, s{sT}, 21
    s_lshl_b32 s90, s{sJ}, 18
    s_add_u32 s{sTmp}, s{sTmp}, s90
    s_lshl_b32 s90, s{sW}, 15
    s_add_u32 s{sTmp}, s{sTmp}, s90""")
    srd(a, SRD_K, P_K, 32768, extra=sTmp)
    srd(a, SRD_V, P_V, 32768, extra=sTmp)
    a(f"""
    s_lshl_b32 s{sTmp}, s{sT}, 17
    s_lshl_b32 s90, s{sW}, 14
    s_add_u32 s{sTmp}, s{sTmp}, s90
    s_lshl_b32 s90, s{sJ}, 7
    s_add_u32 s{sTmp}, s{sTmp}, s90""")
    srd(a, SRD_WO, P_WO, 15*1024+128, extra=sTmp)
    vm.issue("wo", f"buffer_load_dwordx4 v[92:95], v{vWoff}, s[{SRD_WO}:{SRD_WO+3}], 0 offen nt")
    vm.issue("wo", f"buffer_load_dwordx4 v[96:99], v{vWoff}, s[{SRD_WO}:{SRD_WO+3}], s{sK8} offen nt")
    a(f"""
    s_add_u32 s{sTmp}, s{sC}, s{sW}
    s_lshl_b32 s{sTmp}, s{sTmp}, 13
    s_lshl_b32 s90, s{sJ}, 7
    s_add_u32 s{sTmp}, s{sTmp}, s90""")
    srd(a, SRD_W2, P_W2, 7*1024+128, extra=sTmp)
    a(f"    s_cmp_lt_u32 s{sW}, s{sNCH}\n    s_cselect_b32 s{SRD_W2+2}, s{SRD_W2+2}, 0")
    vm.issue("w2", f"buffer_load_dwordx4 v[100:103], v{vWoff}, s[{SRD_W2}:{SRD_W2+3}], 0 offen nt")
    for i in range(R0):
        kload(vm, i)
    stamp(a, cfg, 1)
    srd(a, SRD_OUT, P_OUT, 1024)
    a(f"""
    s_lshl_b32 s{sTmp}, s2, 10
    s_add_u32 s{sQXown}, s{sTmp}, {hx(QX)}
    s_add_u32 s{sOXown}, s{sTmp}, {hx(OX)}
    s_add_u32 s{sFown}, s{sTmp}, {hx(FX)}
    s_lshl_b32 s{sTmp}, s{sT}, 13
    s_add_u32 s{sQXt}, s{sTmp}, {hx(QX)}
    s_add_u32 s{sQXt4}, s{sTmp}, {hx(QX+4096)}
    s_add_u32 s{sOXt}, s{sTmp}, {hx(OX)}
    s_add_u32 s{sOXt4}, s{sTmp}, {hx(OX+4096)}
    s_lshl_b32 s{sTmp}, s{sJ}, 15
    s_lshl_b32 s90, s{sT}, 4
    s_add_u32 s{sTmp}, s{sTmp}, s90
    s_add_u32 s{sFpub}, s{sTmp}, {hx(FX)}
    s_mov_b32 s{sScale}, {hx(f2u(SCALE))}""")
    for n in range(4):
        m = 0x000F000F << (4*n)
        a(f"    s_mov_b32 s{sMask+2*n}, {hx(m)}\n    s_mov_b32 s{sMask+2*n+1}, {hx(m)}")
    a(f"""
    s_mov_b32 s{sSel}, 0xffff0000
    s_mov_b32 s{sSel+1}, 0
    s_mov_b32 s{sSel+2}, 0
    s_mov_b32 s{sSel+3}, 0x0000ffff
    s_mov_b32 s{sSel+4}, 0
    s_mov_b32 s{sSel+5}, 0xffff0000""")
    a(f"""
    v_and_b32 v{vT0}, 1, v{vL}
    v_bfe_u32 v{vT1}, v{vL}, 1, 2
    v_mov_b32 v{vT2}, 0xffff
    v_lshlrev_b32 v{vT0}, 4, v{vT0}
    v_lshlrev_b32 v{vT2}, v{vT0}, v{vT2}""")
    for q in range(4):
        a(f"    v_cmp_eq_u32 vcc, {q}, v{vT1}\n    s_nop 1\n    v_cndmask_b32 v{vM+q}, 0, v{vT2}, vcc")
    a(f"""
    v_lshrrev_b32 v{vT0}, 4, v{vL}               ; gg
    v_and_b32 v{vT1}, 7, v{vL}                   ; jj&7
    v_lshl_add_u32 v107, v{vT0}, 5, v{vT1}
    v_and_b32 v{vT2}, 1, v{vT0}
    v_lshl_add_u32 v{vT2}, v{vT2}, 5, v{vT1}
    v_lshrrev_b32 v{vT0}, 1, v{vT0}              ; half
    v_mul_u32_u24 v{vT0}, {8*RS}, v{vT0}
    s_mul_i32 s{sTmp}, s{sW}, {RS}
    v_mul_u32_u24 v{vT3}, 171, v107
    v_mul_u32_u24 v{vT4}, 171, v{vT2}""")
    for r in range(4):
        a(f"""    v_add_u32 v{116+r}, {1368*r}, v{vT3}
    v_lshrrev_b32 v{116+r}, 9, v{116+r}
    v_add_u32 v{116+r}, v{116+r}, v107
    v_lshl_add_u32 v{116+r}, v{116+r}, 2, s{sTmp}
    v_add_u32 v{120+r}, {1368*r}, v{vT4}
    v_lshrrev_b32 v{120+r}, 9, v{120+r}
    v_add_u32 v{120+r}, v{120+r}, v{vT2}
    v_lshl_add_u32 v{120+r}, v{120+r}, 2, s{sTmp}
    v_add_u32 v{120+r}, v{120+r}, v{vT0}""")
    vm.wait("xs")
    stamp(a, cfg, 2)
    for e in range(4):
        a(f"    v_lshlrev_b32 v{68+2*e}, 16, v{64+e}\n    v_and_b32 v{69+2*e}, 0xffff0000, v{64+e}")
    sMean, sRs = 90, 91
    layernorm_stats(a, 68, 8, sMean, sRs)
    for e in range(8):
        norm1(a, 68+e, 68+e, sMean, sRs)
    for e in range(3):
        a(f"    v_lshlrev_b32 v{104+e}, 16, v{104+e}")
        norm1(a, 104+e, 104+e, sMean, sRs)
    a("    v_cvt_pk_bf16_f32 v104, v104, v104\n    v_cvt_pk_bf16_f32 v105, v105, v105")
    for n in range(2):
        for q in range(4):
            a(f"    v_and_b32 v{vB+4*n+q}, v{104+n}, v{vM+q}")
    vm.wait("wq")
    a(f"""
    s_nop 1
    v_mfma_f32_16x16x32_bf16 v[108:111], v[80:83], {vr(vB,4)}, 0
    v_mfma_f32_16x16x32_bf16 v[108:111], v[84:87], {vr(vB+4,4)}, v[108:111]""")
    layernorm_stats(a, 68, 8, sMean, sRs)
    norm1(a, 106, 106, sMean, sRs)
    a("    v_cvt_pk_bf16_f32 v106, v106, v106")
    for q in range(4):
        a(f"    v_and_b32 v{vB+q}, v106, v{vM+q}")
    vm.wait("w1")
    a(f"""
    s_nop 0
    v_mfma_f32_16x16x32_bf16 v[112:115], v[88:91], {vr(vB,4)}, 0""")
    for r in range(4):
        a(f"    ds_write_b32 v{116+r}, v{108+r} offset:{QP + 32*r}")
    vm.wait("w2")
    a(f"""
    s_lshl_b32 s{sTmp}, s{sW}, 11
    v_add_u32 v{vT0}, s{sTmp}, v{vLin}
    s_lshl_b32 s{sTmp}, s{sW}, 10
    v_add_u32 v{vT1}, s{sTmp}, v{vLin}
    ds_write_b128 v{vT0}, v[92:95] offset:{WO}
    ds_write_b128 v{vT0}, v[96:99] offset:{WO+1024}
    ds_write_b128 v{vT1}, v[100:103] offset:{W2}
    s_mov_b32 exec_lo, 0x00ff00ff
    s_mov_b32 exec_hi, 0xff00ff00""")
    for r in range(4):
        a(f"    ds_write_b32 v{120+r}, v{112+r} offset:{QP + 688 + 32*r}")
    a(f"""
    s_mov_b64 exec, -1
    s_waitcnt lgkmcnt(0)
    s_barrier""")
    stamp(a, cfg, 3)
    return vm

def pv_phase(a, vm, cfg, hooks):
    R = cfg["R"]
    nxt = 0
    for s in range(48, 64):
        vm.wait_out(R-1)
        sload(vm, s)
        avail = s - R - 32
        todo = [i for i in range(nxt, min(avail, nxt+1) + 1)]
        if len(todo) == 2:
            pv_ands(a, todo[0], 0); pv_ands(a, todo[1], 1)
            pv_mfma(a, todo[0], 0); a("    s_nop 0"); pv_mfma(a, todo[1], 1)
        elif len(todo) == 1:
            pv_ands(a, todo[0], 0); a("    s_nop 1"); pv_mfma(a, todo[0], 0)
        nxt += len(todo)
        if s in hooks: hooks[s]()
    if "drain" in hooks: hooks["drain"]()
    b = 0
    while nxt < 32:
        pv_ands(a, nxt, b)
        vm.wait(f"V{nxt}")
        a("    s_nop 0")
        pv_mfma(a, nxt, b)
        b ^= 1; nxt += 1

def write_o(a, cfg):
    a(f"""
    v_lshrrev_b32 v{vT0}, 4, v{vL}
    v_and_b32 v{vT1}, 7, v{vL}
    v_lshl_add_u32 v{vT0}, v{vT0}, 5, v{vT1}
    s_lshl_b32 s{sTmp}, s{sW}, 9
    v_lshl_add_u32 v{vT0}, v{vT0}, 2, s{sTmp}
    s_nop 3""")
    for r in range(4):
        a(f"    ds_write_b32 v{vT0}, v{vO+r} offset:{OR_ + 32*r}")
    a("    s_waitcnt lgkmcnt(0)\n    s_barrier")

def dump_stamps(a, cfg, nst):
    if not cfg["stamps"]: return
    a(f"    s_waitcnt vmcnt(0)\n    v_mov_b32 v{vT0}, 0")
    for k in range(16):
        a(f"    v_writelane_b32 v{vT0}, s{sStamp(k)}, {k}")
    a(f"""
    s_lshl_b32 s{sTmp}, s2, 3
    s_add_u32 s{sTmp}, s{sTmp}, s{sW}
    s_lshl_b32 s{sTmp}, s{sTmp}, 6
    s_add_u32 s{sTmp}, s{sTmp}, {hx(STAMP)}
    v_lshlrev_b32 v{vT1}, 2, v{vL}
    s_mov_b64 exec, 0xffff
    buffer_store_dword v{vT0}, v{vT1}, s[{SRD_WS}:{SRD_WS+3}], s{sTmp} offen
    s_waitcnt vmcnt(0)""")

def path_x(a, vm, cfg):
    R0, R = cfg["R0"], cfg["R"]
    for s in range(R0, 48):
        vm.wait_out(R-1)
        sload(vm, s)
        if s == 31: stamp(a, cfg, 4)
    vm.wait("K31")
    stamp(a, cfg, 5)
    spin_lds(a, FLAG, 1, "Lx_flag", vT0)
    stamp(a, cfg, 6)
    qk_softmax(a, cfg, "x")
    stamp(a, cfg, 7)
    pv_phase(a, vm, cfg, {})
    stamp(a, cfg, 8)
    write_o(a, cfg)
    stamp(a, cfg, 9)
    dump_stamps(a, cfg, 10)
    a("    s_endpgm")

def poll_loop(a, vm, name, issue, check, dstwait=True):
    a(f"""
    s_cbranch_vccz {name}_ok
    s_mov_b32 s{sIt}, 0
{name}_retry:""")
    issue()
    a(f"    s_add_u32 s{sIt}, s{sIt}, 1\n    s_waitcnt vmcnt(0)")
    check()
    a(f"""
    s_cbranch_vccz {name}_ok
    s_cmp_lt_u32 s{sIt}, 0x8000
    s_cbranch_scc1 {name}_retry
{name}_ok:""")

def path_0(a, vm, cfg):
    R0, R, PP = cfg["R0"], cfg["R"], cfg["PP"]
    R = cfg.get("Rw0", R)
    a(f"""
    s_mov_b32 s{sA}, 0x9e3779b1
    v_mul_lo_u32 v{vTag}, v{vTag}, s{sA}
    v_add_u32 v{vTag}, 0x7f4a7c15, v{vTag}""")
    for k in range(16):
        d = 64 + 4*k
        if k == 8: a("    s_waitcnt lgkmcnt(0)")
        a(f"    ds_read_b128 {vr(d,4)}, v{vLin} offset:{QP + k*RS}")
        if k == 8:
            for c in range(3):
                a(f"""    v_add_f32 v{64+c}, v{64+c}, v{68+c}
    v_add_f32 v{72+c}, v{72+c}, v{76+c}
    v_add_f32 v{80+c}, v{80+c}, v{84+c}
    v_add_f32 v{88+c}, v{88+c}, v{92+c}""")
    for c in range(3):
        a(f"""    v_add_f32 v{64+c}, v{64+c}, v{72+c}
    v_add_f32 v{80+c}, v{80+c}, v{88+c}
    v_add_f32 v{64+c}, v{64+c}, v{80+c}""")
    a(f"""
    s_waitcnt lgkmcnt(0)
    s_mov_b32 exec_lo, 0
    s_mov_b32 exec_hi, 0x07fff800""")
    for c in range(3):
        for k in range(8):
            a(f"    v_add_f32 v{64+c}, v{64+c}, v{96+4*k+c}")
    a(f"""
    s_mov_b64 exec, -1
    v_mov_b32 v67, v{vTag}""")
    vm.issue("pubq", f"buffer_store_dwordx4 v[64:67], v{vLin}, s[{SRD_WS}:{SRD_WS+3}], s{sQXown} offen sc1")
    stamp(a, cfg, 4)
    dummy = VM(a)
    def issue_q(v=None): poll8(a, v or dummy, 96, sQXt, sQXt4, "QP")
    def check_q(): check8(a, 96, 3, vT0, vT1)
    pos_checked = False
    for s in range(R0, 48):
        if s == PP:
            issue_q(vm)
        vm.wait_out(R-1)
        if not pos_checked and s > PP:
            idx = max(i for i, n in enumerate(vm.q) if n == "QP")
            if len(vm.q) - 1 - idx >= R-1 or s == 39:
                vm.wait("QP")
                stamp(a, cfg, 5)
                check_q()
                poll_loop(a, vm, "Lq", issue_q, check_q)
                stamp(a, cfg, 6)
                q_finish(a, cfg)
                pos_checked = True
        sload(vm, s)
    assert pos_checked
    vm.wait("K31")
    qk_softmax(a, cfg, "0")
    stamp(a, cfg, 7)
    def m_stage():
        tr_reads(a, W2, 2, 192)
        a(f"    v_lshrrev_b32 v{vT0}, 4, v{vL}\n    v_lshlrev_b32 v{vT0}, 4, v{vT0}")
        for kb in range(2):
            a(f"    ds_read_b128 {vr(224+4*kb,4)}, v{vT0} offset:{HB + 64*kb}")
        a("    s_waitcnt lgkmcnt(0)")
        direct_mm(a, 2, 224, 192, 232, vMres)
    def wo_reads():
        tr_reads(a, WO, 4, 192)
    def weights():
        spin_lds(a, CNT, 8, "L0_cnt", vT0)
        t = 12
        a(f"    v_mov_b32 v{vT0}, 0")
        for k in range(4):
            a(f"    ds_read_b128 {vr(t+4*k,4)}, v{vT0} offset:{ML + 16*k}")
    def weights2():
        spin_lds(a, CNT, 8, "L0_cnt", vT0)
        a(f"    v_mov_b32 v{vT0}, 0")
        regs = [12, 16, 40, 44]
        for k in range(4):
            a(f"    ds_read_b128 {vr(regs[k],4)}, v{vT0} offset:{ML + 16*k}")
        mc = [regs[w//2] + 2*(w & 1) for w in range(8)]
        a(f"""    s_waitcnt lgkmcnt(0)
    v_max3_f32 v{vT0}, v{mc[0]}, v{mc[1]}, v{mc[2]}
    v_max3_f32 v{vT1}, v{mc[3]}, v{mc[4]}, v{mc[5]}
    v_max3_f32 v{vT0}, v{vT0}, v{mc[6]}, v{mc[7]}
    v_max_f32 v{vT0}, v{vT0}, v{vT1}""")
        for w in range(8):
            a(f"    v_sub_f32 v{vWt+w}, v{mc[w]}, v{vT0}")
        for w in range(8):
            a(f"    v_exp_f32 v{vWt+w}, v{vWt+w}")
        a(f"    s_nop 0\n    v_mul_f32 v{vT1}, v{vWt}, v{mc[0]+1}")
        for w in range(1, 8):
            a(f"    v_fmac_f32 v{vT1}, v{vWt+w}, v{mc[w]+1}")
        a(f"""    v_log_f32 v{vW}, v{vT1}
    v_rcp_f32 v{vT1}, v{vT1}
    s_nop 0
    v_add_f32 v{vW}, v{vW}, v{vT0}""")
        for w in range(8):
            a(f"    v_mul_f32 v{vWt+w}, v{vWt+w}, v{vT1}")
    pv_phase(a, vm, cfg, {50: m_stage, 54: wo_reads, "drain": weights2})
    stamp(a, cfg, 8)
    write_o(a, cfg)
    stamp(a, cfg, 9)
    a(f"    v_lshlrev_b32 v{vT0}, 3, v{vL}")
    for w in range(8):
        a(f"    ds_read_b64 v[{64+2*w}:{65+2*w}], v{vT0} offset:{OR_ + 512*w}")
    a(f"""
    v_mov_b32 v82, v{vW}
    v_mov_b32 v83, v{vTag}
    s_waitcnt lgkmcnt(0)
    v_mul_f32 v80, v64, v{vWt}
    v_mul_f32 v81, v65, v{vWt}""")
    for w in range(1, 8):
        a(f"    v_fmac_f32 v80, v{64+2*w}, v{vWt+w}\n    v_fmac_f32 v81, v{65+2*w}, v{vWt+w}")
    vm.issue("pubo", f"buffer_store_dwordx4 v[80:83], v{vLin}, s[{SRD_WS}:{SRD_WS+3}], s{sOXown} offen sc1")
    def issue_o(v=None): poll8(a, v or dummy, 84, sOXt, sOXt4, "OP")
    def check_o(): check8(a, 84, 3, vT0, vT1)
    issue_o(vm)
    a("    s_waitcnt vmcnt(0)")
    check_o()
    poll_loop(a, vm, "Lo", issue_o, check_o)
    stamp(a, cfg, 10)
    P = lambda i, c: 84 + 4*i + c
    a(f"""
    v_max3_f32 v{vT0}, v{P(0,2)}, v{P(1,2)}, v{P(2,2)}
    v_max3_f32 v{vT1}, v{P(3,2)}, v{P(4,2)}, v{P(5,2)}
    v_max3_f32 v{vT0}, v{vT0}, v{P(6,2)}, v{P(7,2)}
    v_max_f32 v{vT0}, v{vT0}, v{vT1}""")
    for i in range(8):
        a(f"    v_sub_f32 v{P(i,2)}, v{P(i,2)}, v{vT0}")
    for i in range(8):
        a(f"    v_exp_f32 v{P(i,2)}, v{P(i,2)}")
    a(f"""
    s_nop 0
    v_add_f32 v{vT0}, v{P(0,2)}, v{P(1,2)}
    v_add_f32 v{vT1}, v{P(2,2)}, v{P(3,2)}
    v_add_f32 v{vT2}, v{P(4,2)}, v{P(5,2)}
    v_add_f32 v{vT3}, v{P(6,2)}, v{P(7,2)}
    v_mul_f32 v80, v{P(0,0)}, v{P(0,2)}
    v_mul_f32 v81, v{P(0,1)}, v{P(0,2)}
    v_add_f32 v{vT0}, v{vT0}, v{vT1}
    v_add_f32 v{vT2}, v{vT2}, v{vT3}""")
    for i in range(1, 8):
        a(f"    v_fmac_f32 v80, v{P(i,0)}, v{P(i,2)}\n    v_fmac_f32 v81, v{P(i,1)}, v{P(i,2)}")
        if i == 1: a(f"    v_add_f32 v{vT0}, v{vT0}, v{vT2}")
        if i == 2: a(f"    v_rcp_f32 v{vT0}, v{vT0}")
    a(f"""
    v_mul_f32 v80, v80, v{vT0}
    v_mul_f32 v81, v81, v{vT0}
    v_lshlrev_b32 v{vT1}, 2, v{vL}
    v_cvt_pk_bf16_f32 v80, v80, v81
    v_lshrrev_b32 v{vT2}, 4, v{vL}
    v_lshlrev_b32 v{vT2}, 4, v{vT2}
    ds_write_b32 v{vT1}, v80 offset:{OB}""")
    for kb in range(4):
        a(f"    ds_read_b128 {vr(12+4*kb,4)}, v{vT2} offset:{OB + 64*kb}")
    a(f"""
    v_lshrrev_b32 v{vT0}, 1, v{vL}
    v_lshlrev_b32 v{vT0}, 10, v{vT0}
    v_and_b32 v{vT1}, 1, v{vL}
    v_lshl_add_u32 v{vT0}, v{vT1}, 9, v{vT0}
    v_mov_b32 v81, v{vMres}
    v_mov_b32 v82, v{vTag}
    s_waitcnt lgkmcnt(0)""")
    direct_mm(a, 4, 12, 192, 32, 80)
    vm.issue("pubf", f"buffer_store_dwordx3 v[80:82], v{vT0}, s[{SRD_WS}:{SRD_WS+3}], s{sFpub} offen sc1")
    stamp(a, cfg, 11)
    a(f"""
    v_lshrrev_b32 v{vT0}, 5, v{vL}
    v_lshlrev_b32 v{vT0}, 9, v{vT0}
    v_and_b32 v{vT1}, 31, v{vL}
    v_lshl_add_u32 v{vT3}, v{vT1}, 4, v{vT0}""")
    def issue_f(v=None):
        (v or dummy).issue("FP", f"buffer_load_dwordx4 v[84:87], v{vT3}, s[{SRD_WS}:{SRD_WS+3}], s{sFown} offen sc1")
    def check_f():
        a(f"    v_cmp_ne_u32 vcc, v86, v{vTag}")
    issue_f(vm)
    a("    s_waitcnt vmcnt(0)")
    check_f()
    poll_loop(a, vm, "Lf", issue_f, check_f)
    stamp(a, cfg, 12)
    for st in ["row_ror:1", "row_ror:2", "row_ror:4", "row_ror:8"]:
        a(f"    v_add_f32_dpp v84, v84, v84 {st} row_mask:0xf bank_mask:0xf\n    v_add_f32_dpp v85, v85, v85 {st} row_mask:0xf bank_mask:0xf\n    s_nop 0")
    a(f"""
    v_add_f32_dpp v84, v84, v84 row_bcast:15 row_mask:0xa bank_mask:0xf
    v_add_f32_dpp v85, v85, v85 row_bcast:15 row_mask:0xa bank_mask:0xf
    v_lshlrev_b32 v{vB2f}, 16, v{vB2f}
    v_lshlrev_b32 v{vXf}, 16, v{vXf}""")
    bf16r(a, 85, 85)
    bf16r(a, 84, 84)
    a(f"    v_add_f32 v85, v85, v{vB2f}")
    bf16r(a, 85, 85)
    a(f"""
    v_mul_f32 v86, {hx(f2u(-math.log2(math.e)))}, v85
    v_exp_f32 v86, v86
    s_nop 0
    v_add_f32 v86, 1.0, v86
    v_rcp_f32 v86, v86
    s_nop 0
    v_mul_f32 v86, v85, v86""")
    bf16r(a, 86, 86)
    a(f"    v_mul_f32 v84, v84, v86")
    bf16r(a, 84, 84)
    a(f"""
    v_add_f32 v84, v84, v{vXf}
    v_cvt_pk_bf16_f32 v84, v84, v84
    v_lshrrev_b32 v{vT0}, 5, v{vL}
    v_lshlrev_b32 v{vT0}, 1, v{vT0}
    s_lshl_b32 s{sTmp}, s2, 2
    s_mov_b32 exec_lo, 0x80000000
    s_mov_b32 exec_hi, 0x80000000
    buffer_store_short v84, v{vT0}, s[{SRD_OUT}:{SRD_OUT+3}], s{sTmp} offen
    s_cmp_lg_u32 s2, 0
    s_cbranch_scc1 L0_noepoch
    s_mov_b64 exec, 1
    v_mov_b32 v{vT1}, 0
    buffer_store_dword v{vTag}, v{vT1}, s[{SRD_WS}:{SRD_WS+3}], 0 offen sc1
L0_noepoch:
    s_mov_b64 exec, -1""")
    stamp(a, cfg, 13)
    dump_stamps(a, cfg, 14)
    a("    s_endpgm")

def q_finish(a, cfg):
    for c in range(3):
        a(f"""    v_add_f32 v{96+c}, v{96+c}, v{100+c}
    v_add_f32 v{104+c}, v{104+c}, v{108+c}
    v_add_f32 v{112+c}, v{112+c}, v{116+c}
    v_add_f32 v{120+c}, v{120+c}, v{124+c}""")
    for c in range(3):
        a(f"""    v_add_f32 v{96+c}, v{96+c}, v{104+c}
    v_add_f32 v{112+c}, v{112+c}, v{120+c}
    v_add_f32 v{96+c}, v{96+c}, v{112+c}""")
    a(f"""
    v_cvt_pk_bf16_f32 v100, v96, v97
    v_cvt_pk_bf16_f32 v101, v98, v98
    v_mul_u32_u24 v{vT0}, 6, v{vL}
    v_subrev_u32 v{vT1}, 43, v{vL}
    v_mul_u32_u24 v{vT1}, 12, v{vT1}
    s_mov_b32 exec_lo, -1
    s_mov_b32 exec_hi, 0x7ff
    ds_write_b16 v{vT0}, v100 offset:{QL}
    ds_write_b16_d16_hi v{vT0}, v100 offset:{QL+2}
    ds_write_b16 v{vT0}, v101 offset:{QL+4}
    s_mov_b32 exec_lo, 0
    s_mov_b32 exec_hi, 0x07fff800
    ds_write_b32 v{vT1}, v96 offset:{HP}
    ds_write_b32 v{vT1}, v97 offset:{HP+4}
    ds_write_b32 v{vT1}, v98 offset:{HP+8}
    s_mov_b64 exec, 1
    v_mov_b32 v{vT0}, 0
    v_mov_b32 v{vT1}, 1
    ds_write_b32 v{vT0}, v{vT1} offset:{FLAG}
    s_mov_b64 exec, -1
    v_lshlrev_b32 v{vT0}, 2, v{vL}
    ds_read_b32 v96, v{vT0} offset:{HP}
    v_lshlrev_b32 v{vB1}, 16, v{vB1}
    s_lshl_b32 s{sA}, s{sNCH}, 3
    s_waitcnt lgkmcnt(0)""")
    bf16r(a, 96, 96)
    a(f"    v_add_f32 v96, v96, v{vB1}")
    bf16r(a, 96, 96)
    k0 = math.sqrt(2/math.pi)
    c1 = -2*math.log2(math.e)*k0
    c3 = c1*0.044715
    a(f"""
    v_mul_f32 v97, v96, v96
    v_mov_b32 v98, {hx(f2u(c1))}
    v_fmac_f32 v98, {hx(f2u(c3))}, v97
    v_mul_f32 v98, v98, v96                       ; -2 log2e * u
    v_exp_f32 v98, v98
    s_nop 0
    v_add_f32 v98, 1.0, v98
    v_rcp_f32 v98, v98
    v_cmp_gt_u32 vcc, s{sA}, v{vL}
    v_mul_f32 v96, v96, v98
    v_lshlrev_b32 v{vT0}, 1, v{vL}
    v_cvt_pk_bf16_f32 v96, v96, v96
    v_cndmask_b32 v96, 0, v96, vcc
    ds_write_b16 v{vT0}, v96 offset:{HB}""")

def gen(cfg):
    a = Asm()
    vm = prologue(a, cfg)
    a(f"    s_cmp_eq_u32 s{sW}, 0\n    s_cbranch_scc1 L_path0")
    path_x(a, vm.copy(), cfg)
    a("L_path0:")
    path_0(a, vm.copy(), cfg)
    a("L_end:\n    s_endpgm")
    txt = kernel_file(a.text(), 256, 512, LDS_SIZE, 256, 102, 256)
    launch = txt.split("\n", 1)
    return HEADER + launch[0] + "\n" + launch[1]

DEF = dict(R0=12, R=12, PP=24, stamps=False)
if __name__ == "__main__":
    out = sys.argv[1]
    cfg = dict(DEF)
    for kv in sys.argv[2:]:
        k, v = kv.split("="); cfg[k] = int(v)
    open(out, "w").write(gen(cfg))
```
